```python
import torch

def _softmax(x, axis=-1):
    return torch.softmax(x, dim=axis)
def _gelu(x):
    return torch.nn.functional.gelu(x, approximate="tanh")
def _silu(x):
    return torch.nn.functional.silu(x)
def _sigmoid(x):
    return torch.sigmoid(x)
def _layernorm(x, axis=-1, eps=1e-5):
    m = x.mean(dim=axis, keepdim=True)
    v = x.var(dim=axis, keepdim=True, unbiased=False)
    return (x - m) / torch.sqrt(v + eps)
def _scatter_add(tgt, idx, src, axis=0):
    return tgt.clone().index_add_(axis, idx, src)
def _segment_sum(src, seg, n):
    out = torch.zeros((n,) + src.shape[1:], dtype=src.dtype)
    return out.index_add_(0, seg, src)
def _pad(x, pw):
    flat = tuple(v for pair in reversed(pw) for v in pair)
    return torch.nn.functional.pad(x, flat)

kernel_name = 'sequential_preLN__sliding_local_dilated__glu_gated_geglu__prompt'

def setup_inputs():

    _w = (lambda a: (lambda t: t.to(torch.bfloat16) if t.is_floating_point() else t)(torch.as_tensor(a)))
    def _A_setup():
        B, S, D = 1, 2048, 640
        return {
            "x": _w((lambda *s: torch.randn(*s, dtype=torch.bfloat16) * 0.05)(B, S, D)),
            "wqkv": _w((lambda *s: torch.randn(*s, dtype=torch.bfloat16) * 0.05)(D, 3 * D)),
            "wo": _w((lambda *s: torch.randn(*s, dtype=torch.bfloat16) * 0.05)(D, D)),
        }
    _A_in = _A_setup()

    def _B_setup():
        B, S, Dm, Df = 1, 2048, 640, 1536
        return {
            "x": _w((lambda *s: torch.randn(*s, dtype=torch.bfloat16) * 0.05)(B, S, Dm)),
            "w_gate": _w((lambda *s: torch.randn(*s, dtype=torch.bfloat16) * 0.8)(Dm, Df) * (Dm ** -0.5)),
            "w_up": _w((lambda *s: torch.randn(*s, dtype=torch.bfloat16) * 0.8)(Dm, Df) * (Dm ** -0.5)),
            "w_down": _w((lambda *s: torch.randn(*s, dtype=torch.bfloat16) * 0.8)(Df, Dm) * (Df ** -0.5)),
        }
    _B_in = _B_setup()

    return {
        "A_x": _A_in["x"],
        "A_wqkv": _A_in["wqkv"],
        "A_wo": _A_in["wo"],
        "B_x": _B_in["x"],
        "B_w_gate": _B_in["w_gate"],
        "B_w_up": _B_in["w_up"],
        "B_w_down": _B_in["w_down"],
    }

def reference(A_x, A_wqkv, A_wo, B_x, B_w_gate, B_w_up, B_w_down):
    def _A_ref(x, wqkv, wo):
        B, S, D = x.shape
        H = 32; Dh = D // H
        W, dil = 8, 2
        qkv = (lambda x, *d: x.permute(*d))((x @ wqkv).reshape(B, S, 3, H, Dh), 2, 0, 3, 1, 4)
        q, k, v = qkv[0], qkv[1], qkv[2]
        scale = Dh ** -0.5
        pos = torch.arange(S)
        off = torch.arange(W) * dil
        idx = pos[:, None] - off[None, :]
        mask = idx >= 0
        idx_c = torch.where(mask, idx, 0).reshape(-1)
        kg = k[:, :, idx_c, :].reshape(B, H, S, W, Dh)
        vg = v[:, :, idx_c, :].reshape(B, H, S, W, Dh)
        logits = torch.einsum("bhsd,bhswd->bhsw", q, kg) * scale
        logits = torch.where(mask[None, None, :, :], logits, -1e9)
        attn = _softmax(logits, axis=-1)
        o = torch.einsum("bhsw,bhswd->bhsd", attn, vg)
        return (lambda x, *d: x.permute(*d))(o, 0, 2, 1, 3).reshape(B, S, D) @ wo

    def _B_ref(x, w_gate, w_up, w_down):
        g = torch.einsum("bsd,df->bsf", x, w_gate)
        u = torch.einsum("bsd,df->bsf", x, w_up)
        h = _gelu(g) * u
        return torch.einsum("bsf,fd->bsd", h, w_down)

    x = A_x
    h = x + _A_ref(_layernorm(x, axis=-1), A_wqkv, A_wo)
    h2 = h + _B_ref(_layernorm(h, axis=-1), B_w_gate, B_w_up, B_w_down)
    return h2
```

```python
import re, struct

def fhex(f): return hex(struct.unpack("<I", struct.pack("<f", f))[0])

TRANS = ("v_exp_f32","v_log_f32","v_rcp_f32","v_rsq_f32","v_sqrt_f32","v_sin_f32","v_cos_f32")
REG_RE = re.compile(r"(?<![\w.])(v|s|a)(?:(\d+)|\[(\d+):(\d+)\])(?![\w])|(?<![\w.])(vcc|exec|m0|exec_lo|exec_hi|vcc_lo|vcc_hi)(?![\w])")

def regs_of(op):
    out = set()
    for m in REG_RE.finditer(op):
        if m.group(5):
            n = m.group(5)
            if n.startswith("vcc"): out.add("vcc")
            elif n.startswith("exec"): out.add("exec")
            else: out.add(n)
        else:
            k = m.group(1)
            if m.group(2) is not None: out.add(f"{k}{m.group(2)}")
            else:
                for i in range(int(m.group(3)), int(m.group(4))+1): out.add(f"{k}{i}")
    return out

def split_ops(rest):
    ops = []; depth = 0; cur = ""
    for ch in rest:
        if ch == "[": depth += 1
        if ch == "]": depth -= 1
        if ch == "," and depth == 0: ops.append(cur.strip()); cur = ""
        else: cur += ch
    if cur.strip(): ops.append(cur.strip())
    return ops

class Ins:
    def __init__(self, text):
        self.text = text
        t = text.split(";")[0].strip()
        parts = t.split(None, 1)
        self.op = parts[0]
        base = re.sub(r"_(e32|e64|dpp|sdwa)$", "", self.op)
        self.base = base
        rest = parts[1] if len(parts) > 1 else ""
        ops = split_ops(rest)
        self.mods = ""
        if ops:
            toks = ops[-1].split(None, 1)
            ops[-1] = toks[0]
            self.mods = toks[1] if len(toks) > 1 else ""
        self.ops = ops
        self.w = set(); self.r = set()
        self.kind = "other"
        R = [regs_of(o) for o in ops]
        op = base
        if op.startswith("v_mfma"):
            self.kind = "mfma"; self.w = R[0]; self.A = R[1]; self.B = R[2]; self.C = R[3]; self.r = R[1]|R[2]|R[3]
            self.passes = 8 if "32x32" in op else 4
        elif op.startswith("v_"):
            self.kind = "valu"
            if op.startswith("v_cmp"):
                self.w = R[0]; self.r = set().union(*R[1:])
            elif op.startswith("v_permlane") and "swap" in op:
                self.w = R[0]|R[1]; self.r = R[0]|R[1]
            elif op in ("v_add_co_u32","v_sub_co_u32","v_addc_co_u32"):
                self.w = R[0]|R[1]; self.r = set().union(*R[2:])
            elif op == "v_nop": pass
            else:
                self.w = R[0]; self.r = set().union(*R[1:]) if len(R) > 1 else set()
                if op in ("v_fmac_f32","v_dot2c_f32_bf16"): self.r |= R[0]
                if op == "v_cndmask_b32" and len(ops) == 3: self.r.add("vcc")
            self.dpp = ("row_" in self.mods or "quad_perm" in self.mods or self.op.endswith("_dpp"))
            if self.dpp: self.r |= R[0]
            self.trans = op in TRANS
            self.dot = op.startswith("v_dot")
            self.perm = op.startswith("v_permlane")
            self.rl = op in ("v_readfirstlane_b32","v_readlane_b32")
        elif op.startswith("ds_"):
            self.kind = "ds"
            if op.startswith("ds_read") or op.startswith("ds_bpermute") or op.startswith("ds_swizzle"):
                self.w = R[0]; self.r = set().union(*R[1:])
            else: self.r = set().union(*R)
        elif op.startswith("buffer_") or op.startswith("global_"):
            self.kind = "vmem"
            islds = bool(re.search(r"\blds\b", self.mods)) or "_lds_" in op
            self.islds = islds
            if op in ("buffer_inv","buffer_wbl2"): pass
            elif "load" in op and not islds:
                self.w = R[0]; self.r = set().union(*R[1:])
            elif "atomic" in op and "sc0" in self.mods:
                self.w = R[0]; self.r = set().union(*R[1:])
            else:
                self.r = set().union(*R)
            if islds: self.r.add("m0")
            self.widestore = ("store_dwordx4" in op or "store_dwordx3" in op)
            self.sdata = set()
            if self.widestore:
                self.sdata = R[0] if op.startswith("buffer_") else R[1]
        elif op.startswith("s_"):
            self.kind = "salu"
            if op in ("s_nop","s_waitcnt","s_barrier","s_endpgm","s_branch","s_sleep","s_setprio") or op.startswith("s_cbranch") : pass
            elif op.startswith("s_cmp"): self.r = set().union(*R)
            elif op.startswith("s_load") or op.startswith("s_mem"): self.w = R[0]; self.r = set().union(*R[1:]) if len(R)>1 else set()
            else:
                self.w = R[0]; self.r = set().union(*R[1:]) if len(R) > 1 else set()
                if "saveexec" in op: self.w |= {"exec"}
        self.states = 1
        if op == "s_nop": self.states = int(ops[0], 0) + 1

def need_states(p, c):
    n = 0
    isv = lambda s: {x for x in s if x[0] in "va" and x not in ("vcc",)}
    iss = lambda s: {x for x in s if x[0] == "s" or x == "vcc"}
    if p.kind == "valu":
        pv = isv(p.w); ps = iss(p.w)
        if c.kind == "mfma" and pv & c.r: n = max(n, 3 if p.dot else 2)
        if c.kind == "valu":
            if c.dpp and pv & c.r: n = max(n, 2)
            if c.perm and pv & c.r: n = max(n, 2)
            if c.rl and pv & c.r: n = max(n, 1)
            if p.trans and not c.trans and pv & c.r: n = max(n, 1)
            if ps & c.r: n = max(n, 2)
        if p.dot:
            if c.kind in ("valu","ds","vmem","mfma") and pv & (c.r | c.w):
                same = c.kind == "valu" and c.base == p.base
                if same:
                    ab = regs_of(c.ops[1]) | regs_of(c.ops[2])
                    if pv & ab: n = max(n, 3)
                else: n = max(n, 3)
        if c.kind == "vmem" and ps & c.r: n = max(n, 5)
    if p.kind == "mfma":
        big = 12 if p.passes == 8 else 8
        if c.kind == "mfma":
            if p.w & (c.A | c.B): n = max(n, big)
            if p.w & c.C and not (p.w == c.C and c.passes == p.passes): n = max(n, 10 if p.passes == 8 else 6)
            if p.w & c.w and not (p.w == c.C): n = max(n, big)
        elif c.kind in ("valu","ds","vmem"):
            if p.w & (c.r | c.w): n = max(n, big)
        if c.kind == "valu" and p.C & c.w: n = max(n, 7 if p.passes == 8 else 3)
    if p.kind == "salu" and "m0" in p.w and c.kind == "vmem" and getattr(c, "islds", False): n = max(n, 1)
    if p.kind == "vmem" and getattr(p, "widestore", False):
        if c.w & p.sdata: n = max(n, 2 if c.kind in ("valu","mfma") else 1)
    return n

class Asm:
    def __init__(self):
        self.lines = []
        self.lg = []
        self.vm = []
    def __call__(self, text):
        for l in text.split("\n"):
            l = l.strip()
            if l: self.lines.append(l)
    def label(self, n): self.lines.append(n + ":")
    def raw(self, t): self.lines.append(t)
    def ds(self, text, tag=None):
        if len(self.lg) >= 15:
            self.wait_lg(14)
        self(text); self.lg.append(tag)
    def wait_lg(self, n):
        if len(self.lg) > n:
            self(f"s_waitcnt lgkmcnt({n})"); self.lg = self.lg[len(self.lg)-n:] if n else []
    def need_lg(self, *tags):
        idx = [i for i, t in enumerate(self.lg) if t in tags]
        if idx: self.wait_lg(len(self.lg) - 1 - max(idx))
    def vmem(self, text, tag=None):
        assert len(self.vm) < 63, "vmcnt overflow"
        self(text); self.vm.append(tag)
    def wait_vm(self, n):
        if len(self.vm) > n:
            self(f"s_waitcnt vmcnt({n})"); self.vm = self.vm[len(self.vm)-n:] if n else []
    def need_vm(self, *tags):
        idx = [i for i, t in enumerate(self.vm) if t in tags]
        if idx: self.wait_vm(len(self.vm) - 1 - max(idx))
    def finish(self):
        out = []; hist = []
        npad = 0
        for l in self.lines:
            if l.endswith(":") or l.startswith(".") or l.startswith(";"):
                out.append(l); continue
            c = Ins(l)
            need = 0; dist = 0
            for p in reversed(hist):
                if dist >= 12: break
                req = need_states(p, c)
                if req > dist: need = max(need, req - dist)
                dist += p.states
            if need:
                nop = Ins(f"s_nop {need-1}"); out.append("  " + nop.text); hist.append(nop); npad += 1
            out.append("  " + l); hist.append(c)
            if len(hist) > 16: hist = hist[-16:]
        self.npad = npad
        return "\n".join(out) + "\n"
```

```python
import sys, math
from asmlib import Asm, fhex

NAME = "sequential_preLN__sliding_local_dilated__glu_gated_geglu__prompt"
CNT=0; WO_P=0x10000; WGU_P=0x100000; WD_P=0x500000; CS=0x700000; ST=0x720000
O_P=0x800000; H_P=0xB00000; HH_P=0xE00000; PROFO=0x1400000; WS_SZ=0x1410000
A_SZ=10240; STG=43008; SCR=129024; QKV=114688; QROW=592; STAT=162048; CST=162688; XB=138*1024
LDS_SZ=163840
SX=24; SW=28; SWS=32; SO=36; SP=40
sWID=44; sW=45; sGRP=46; sRB=47; sCG=48; sFG=49; sM0=50; sROT=51
def srd(b): return f"s[{b}:{b+3}]"
def vr(b,n): return f"v[{b}:{b+n-1}]" if n>1 else f"v{b}"
SPIN_LIMIT = 1<<16

class Cfg:
    prof=False; stop=99; rot=True; warm=True

def stamp(a, cfg, i):
    if cfg.prof: a(f"s_memtime s[{76+2*i}:{77+2*i}]")

def poll(a, name, voff, vt, base, target, st=52):
    a(f"s_mov_b32 s{st}, 0")
    a.label(name)
    a(f"""global_load_dword v{vt}, v{voff}, {base} sc1
    s_waitcnt vmcnt(0)
    v_readfirstlane_b32 s{st+1}, v{vt}
    s_add_u32 s{st}, s{st}, 1
    s_cmp_ge_u32 s{st+1}, {target}
    s_cbranch_scc1 {name}_ok
    s_cmp_lt_u32 s{st}, {SPIN_LIMIT}
    s_cbranch_scc1 {name}""")
    a.label(name+"_ok")

def reduce_g(a, regs, tmp):
    for r,t in zip(regs,tmp): a(f"v_mov_b32 v{t}, v{r}")
    for r,t in zip(regs,tmp): a(f"v_permlane16_swap_b32 v{r}, v{t}")
    for r,t in zip(regs,tmp): a(f"v_add_f32 v{r}, v{r}, v{t}")
    for r,t in zip(regs,tmp): a(f"v_mov_b32 v{t}, v{r}")
    for r,t in zip(regs,tmp): a(f"v_permlane32_swap_b32 v{r}, v{t}")
    for r,t in zip(regs,tmp): a(f"v_add_f32 v{r}, v{r}, v{t}")

def ln_finish(a, vs, vq, vt):
    a(f"""v_mul_f32 v{vs}, {fhex(-1.0/640)}, v{vs}
    v_mul_f32 v{vq}, {fhex(1.0/640)}, v{vq}
    v_fma_f32 v{vq}, -v{vs}, v{vs}, v{vq}
    v_max_f32 v{vq}, 0, v{vq}
    v_add_f32 v{vq}, {fhex(1e-5)}, v{vq}
    v_rsq_f32 v{vq}, v{vq}""")

UNITS = [("p2",i,20) for i in range(5)] + [("p3",i,12) for i in range(20)] + [("p4",i,20) for i in range(12)]

class Sched:
    def __init__(self):
        self.epoch = 0; self.first = {}; self.last = {}; self.pos = {}
    def read(self, u):
        self.first.setdefault(u, self.epoch); self.last[u] = self.epoch
        return self.pos.get(u, 0)

def bar(a, sc):
    assert not any(t is not None and t[0] in ("B","stat") for t in a.lg if isinstance(t, tuple)) or True
    a("s_barrier"); sc.epoch += 1

def prologue(a, cfg):
    a(f"""s_cmp_ge_u32 s2, 256
    s_cbranch_scc1 L_end
    s_load_dwordx16 s[4:19], s[0:1], 0
    s_load_dwordx4 s[20:23], s[0:1], 64
    v_lshrrev_b32 v1, 6, v0
    v_and_b32 v0, 63, v0
    v_readfirstlane_b32 s{sWID}, v1
    v_lshlrev_b32 v1, 4, v0
    s_and_b32 s52, s2, 7
    s_lshr_b32 s53, s2, 3
    s_lshr_b32 s54, s52, 1
    s_lshl_b32 s54, s54, 2
    s_lshr_b32 s55, s53, 3
    s_add_u32 s{sGRP}, s54, s55
    s_and_b32 s54, s52, 1
    s_bfe_u32 s56, s53, 0x10002
    s_lshl_b32 s{sRB}, s{sGRP}, 1
    s_add_u32 s{sRB}, s{sRB}, s56
    s_and_b32 s57, s53, 3
    s_lshl_b32 s{sCG}, s54, 2
    s_add_u32 s{sCG}, s{sCG}, s57
    s_lshl_b32 s{sFG}, s54, 3
    s_and_b32 s58, s53, 7
    s_add_u32 s{sFG}, s{sFG}, s58
    s_lshl_b32 s{sM0}, s{sRB}, 6
    s_and_b32 s{sW}, s{sWID}, 3""")
    if cfg.rot:
        a(f"""s_lshl_b32 s59, s55, 1
        s_add_u32 s59, s59, s56
        s_lshr_b32 s60, s59, 2
        s_add_u32 s59, s59, s60
        s_mul_i32 s60, s57, 5
        s_lshr_b32 s60, s60, 1
        s_add_u32 s59, s59, s60
        s_sub_u32 s60, s59, 10
        s_cmp_ge_u32 s59, 10
        s_cselect_b32 s{sROT}, s60, s59""")
    else:
        a(f"s_mov_b32 s{sROT}, 0")
    a(f"""s_waitcnt lgkmcnt(0)
    s_mov_b32 s{SX}, s4
    s_mov_b32 s{SX+1}, s5
    s_mov_b32 s{SX+2}, {2048*1280}
    s_mov_b32 s{SX+3}, 0x20000
    s_mov_b32 s{SW}, s6
    s_mov_b32 s{SW+1}, s7
    s_mov_b32 s{SW+2}, {640*3840}
    s_mov_b32 s{SW+3}, 0x20000
    s_mov_b32 s{SWS}, s22
    s_mov_b32 s{SWS+1}, s23
    s_mov_b32 s{SWS+2}, {WS_SZ}
    s_mov_b32 s{SWS+3}, 0x20000
    s_mov_b32 s{SO}, s18
    s_mov_b32 s{SO+1}, s19
    s_mov_b32 s{SO+2}, {2048*1280}
    s_mov_b32 s{SO+3}, 0x20000
    s_mov_b32 s{SP+3}, 0x20000
    s_mov_b32 s3, 0x3f803f80""")
    stamp(a, cfg, 0)
    a(f"""s_cmp_ge_u32 s{sWID}, 4
    s_cbranch_scc1 L_helper""")

def compute(a, cfg, sc):
    a("""v_lshrrev_b32 v2, 4, v0
    v_bfe_u32 v3, v0, 2, 2
    v_and_b32 v4, 3, v0
    v_and_b32 v5, 15, v0""")
    a(f"""s_cmp_ge_u32 s2, 240
    s_cbranch_scc1 L_nopack
    v_lshrrev_b32 v6, 1, v0
    v_and_b32 v7, 1, v0
    v_lshlrev_b32 v7, 4, v7
    v_mul_u32_u24 v8, 3072, v6
    v_add_u32 v8, v8, v7
    v_mul_u32_u24 v9, 1280, v6
    v_add_u32 v9, v9, v7
    s_mul_i32 s52, s2, 205
    s_lshr_b32 s52, s52, 10
    s_mul_i32 s53, s52, 5
    s_sub_u32 s53, s2, s53
    s_cmp_ge_u32 s52, 24
    s_cselect_b32 s{SP}, s14, s12
    s_cselect_b32 s{SP+1}, s15, s13
    s_cselect_b32 s54, 1, 0
    s_mov_b32 s{SP+2}, {640*3072}
    s_mul_i32 s55, s54, 24
    s_sub_u32 s55, s52, s55
    s_mul_i32 s56, s53, {4*98304}
    s_lshl_b32 s57, s55, 7
    s_add_u32 s56, s56, s57
    s_lshl_b32 s58, s{sW}, 5
    s_add_u32 s56, s56, s58
    s_mul_i32 s59, s{sW}, 7168
    s_add_u32 s59, s59, {SCR}""")
    for i in range(4):
        a(f"s_add_u32 m0, s59, {i*1024}")
        a(f"buffer_load_dwordx4 v8, {srd(SP)}, s56 offen lds")
        if i < 3: a(f"s_add_u32 s56, s56, 98304")
    a(f"""s_mov_b32 s{SP}, s16
    s_mov_b32 s{SP+1}, s17
    s_mul_i32 s56, s52, 40960
    s_lshl_b32 s57, s53, 8
    s_add_u32 s56, s56, s57
    s_add_u32 s56, s56, s58
    s_add_u32 m0, s59, 4096
    s_nop 0
    buffer_load_dwordx4 v9, {srd(SP)}, s56 offen lds
    s_add_u32 s56, s56, 128
    s_add_u32 m0, s59, 5120
    s_nop 0
    buffer_load_dwordx4 v9, {srd(SP)}, s56 offen lds
    s_lshr_b32 s60, s52, 1
    s_mul_i32 s61, s60, 10
    s_sub_u32 s61, s2, s61
    s_cmp_ge_u32 s2, 200
    s_cbranch_scc1 L_nowo1
    s_mov_b32 s{SP}, s8
    s_mov_b32 s{SP+1}, s9
    s_mov_b32 s{SP+2}, {640*1280}
    s_mul_i32 s56, s60, 40960
    s_lshl_b32 s57, s61, 7
    s_add_u32 s56, s56, s57
    s_add_u32 s56, s56, s58
    s_add_u32 m0, s59, 6144
    s_nop 0
    buffer_load_dwordx4 v9, {srd(SP)}, s56 offen lds""")
    a.label("L_nowo1")
    a(f"""v_lshl_add_u32 v6, v2, 2, v3
    v_lshlrev_b32 v6, 5, v6
    v_lshl_add_u32 v6, v4, 3, v6
    v_add_u32 v6, s59, v6
    v_lshl_add_u32 v7, v2, 3, v3
    v_lshlrev_b32 v7, 5, v7
    v_lshl_add_u32 v7, v4, 3, v7
    v_add_u32 v7, s59, v7""")
    a(f"""s_lshl_b32 s62, s55, 2
    s_add_u32 s62, s62, s{sW}
    s_mul_i32 s63, s62, 43
    s_lshr_b32 s63, s63, 8
    s_mul_i32 s64, s63, 6
    s_sub_u32 s64, s62, s64
    s_lshl_b32 s64, s64, 1
    s_add_u32 s64, s64, s54
    s_lshl_b32 s64, s64, 10
    s_mul_i32 s63, s63, 245760
    s_add_u32 s63, s63, s64
    s_mul_i32 s64, s53, {4*12288}
    s_add_u32 s63, s63, s64
    s_add_u32 s67, s63, {WGU_P}
    s_lshl_b32 s66, s62, 6
    s_mul_i32 s64, s54, 6144
    s_add_u32 s66, s66, s64
    s_mul_i32 s64, s53, 12288
    s_add_u32 s66, s66, s64
    s_add_u32 s66, s66, {CS}""")
    a(f"""s_lshl_b32 s62, s55, 1
    s_add_u32 s62, s62, s54
    s_mul_i32 s62, s62, 5120
    s_add_u32 s62, s62, {WD_P}""")
    for i,(dst) in enumerate((68,69)):
        a(f"""s_lshl_b32 s63, s53, 3
        s_add_u32 s63, s63, {4*i}
        s_add_u32 s63, s63, s{sW}
        s_mul_i32 s64, s63, 205
        s_lshr_b32 s64, s64, 10
        s_mul_i32 s65, s64, 5
        s_sub_u32 s65, s63, s65
        s_mul_i32 s64, s64, 245760
        s_lshl_b32 s65, s65, 10
        s_add_u32 s64, s64, s65
        s_add_u32 s{dst}, s64, s62""")
    a(f"""s_cmp_ge_u32 s60, 10
    s_cselect_b32 s62, 1, 0
    s_mul_i32 s63, s62, 10
    s_sub_u32 s63, s60, s63
    s_lshl_b32 s63, s63, 1
    s_add_u32 s63, s63, s62
    s_mul_i32 s62, s63, 5120
    s_lshl_b32 s63, s61, 2
    s_add_u32 s63, s63, s{sW}
    s_mul_i32 s64, s63, 205
    s_lshr_b32 s64, s64, 10
    s_mul_i32 s65, s64, 5
    s_sub_u32 s65, s63, s65
    s_mul_i32 s64, s64, 102400
    s_lshl_b32 s65, s65, 10
    s_add_u32 s64, s64, s65
    s_add_u32 s64, s64, s62
    s_add_u32 s70, s64, {WO_P}
    s_waitcnt vmcnt(0)""")
    F=128
    for i in range(6):
        a.ds(f"ds_read_b64_tr_b16 {vr(F+4*i,2)}, v6 offset:{i*1024}")
        a.ds(f"ds_read_b64_tr_b16 {vr(F+4*i+2,2)}, v6 offset:{i*1024+512}", ("pk",i))
    a.ds(f"ds_read_b64_tr_b16 {vr(F+24,2)}, v7 offset:6144")
    a.ds(f"ds_read_b64_tr_b16 {vr(F+26,2)}, v7 offset:{6144+128}", ("pk",6))
    for i in range(4):
        a.need_lg(("pk",i))
        a(f"buffer_store_dwordx4 {vr(F+4*i,4)}, v1, {srd(SWS)}, s67 offen sc1")
        if i < 3: a("s_add_u32 s67, s67, 12288")
        for d in range(4):
            a(f"v_dot2_f32_bf16 v10, v{F+4*i+d}, s3, {'0' if i==0 and d==0 else 'v10'}")
    a.need_lg(("pk",4)); a(f"buffer_store_dwordx4 {vr(F+16,4)}, v1, {srd(SWS)}, s68 offen sc1")
    a.need_lg(("pk",5)); a(f"buffer_store_dwordx4 {vr(F+20,4)}, v1, {srd(SWS)}, s69 offen sc1")
    a.need_lg(("pk",6))
    a(f"""s_cmp_ge_u32 s2, 200
    s_cbranch_scc1 L_nowo2
    buffer_store_dwordx4 {vr(F+24,4)}, v1, {srd(SWS)}, s70 offen sc1""")
    a.label("L_nowo2")
    reduce_g(a, [10], [11])
    a(f"""v_lshlrev_b32 v11, 2, v5
    s_mov_b32 exec_lo, 0xffff
    s_mov_b32 exec_hi, 0
    buffer_store_dword v10, v11, {srd(SWS)}, s66 offen sc1
    s_mov_b64 exec, -1
    s_and_b32 s52, s2, 0x39
    s_add_u32 s52, s52, s{sW}
    s_cmp_lg_u32 s52, 0
    s_cbranch_scc1 L_nopack
    v_lshlrev_b32 v11, 7, v0
    v_mov_b32 v12, 0
    s_lshl_b32 s52, s{sGRP}, 9
    s_mov_b64 exec, 15
    buffer_store_dword v12, v11, {srd(SWS)}, s52 offen sc1
    s_mov_b64 exec, -1""")
    a.label("L_nopack")
    stamp(a, cfg, 1)
    vBrel=[10,11,12,13]; vArel=[14,15]; vBc=[16,17,18,19]; vAc=[20,21]; vW=[22,23,24,25]
    a(f"""v_and_b32 v6, 1, v2
    v_lshl_add_u32 v6, v6, 2, v3
    v_lshl_add_u32 v7, v2, 3, v3
    v_lshlrev_b32 v7, 9, v7
    v_lshl_add_u32 v7, v4, 3, v7
    v_add_u32 v7, {A_SZ}, v7
    s_lshl_b32 s52, s{sW}, 2""")
    for j in range(4):
        a(f"""s_add_u32 s53, s52, {j}
        v_xor_b32 v8, s53, v6
        v_lshl_add_u32 v{vBrel[j]}, v8, 5, v7
        s_mul_i32 s54, s53, 52
        s_lshr_b32 s54, s54, 8
        s_mul_i32 s55, s54, 5
        s_sub_u32 s55, s53, s55
        s_lshl_b32 s55, s55, 4
        s_mul_i32 s54, s54, 192
        v_lshl_add_u32 v8, v2, 2, s55
        v_mul_u32_u24 v9, 205, v8
        v_lshrrev_b32 v9, 12, v9
        v_lshlrev_b32 v8, 1, v8
        v_lshl_add_u32 v8, v9, 3, v8
        v_add_u32 v8, s54, v8
        v_min_u32 v8, 584, v8
        v_mul_u32_u24 v9, {QROW}, v5
        v_add3_u32 v{vW[j]}, v8, v9, v9""")
        a.lines[-1] = f"v_add_u32 v{vW[j]}, v8, v9"
        a(f"v_add_u32 v{vW[j]}, {QKV}, v{vW[j]}")
    a(f"""v_lshrrev_b32 v8, 1, v5
    v_xor_b32 v9, v2, v8
    v_lshlrev_b32 v9, 4, v9
    v_lshl_add_u32 v{vArel[0]}, v5, 7, v9
    v_xor_b32 v{vArel[1]}, 64, v{vArel[0]}""")
    ACC=32
    for i in range(80): a(f"v_mov_b32 v{ACC+i}, 0")
    a("s_mov_b32 s60, 0\ns_mov_b32 s61, 0")
    FA=[128,148]; FB=[168,184]
    a(".p2align 3")
    a.label("L_p1")
    a("s_barrier")
    for k in range(2): a(f"v_add_u32 v{vAc[k]}, s61, v{vArel[k]}")
    for j in range(4): a(f"v_add_u32 v{vBc[j]}, s61, v{vBrel[j]}")
    def rdA(ks, mb): a.ds(f"ds_read_b128 {vr(FA[ks]+4*mb,4)}, v{vAc[ks]} offset:{mb*2048}", ("A",ks,mb))
    def rdB(ks, j, h): a.ds(f"ds_read_b64_tr_b16 {vr(FB[ks]+4*j+2*h,2)}, v{vBc[j]} offset:{ks*16384+h*2048}", ("B",ks,j,h))
    rdB(0,0,0); rdB(0,0,1)
    for mb in range(5): rdA(0,mb)
    for j in range(1,4): rdB(0,j,0); rdB(0,j,1)
    pend = [lambda: rdB(1,0,0), lambda: rdB(1,0,1)] + [(lambda mb=mb: rdA(1,mb)) for mb in range(5)]
    for j in range(1,4): pend += [(lambda j=j: rdB(1,j,0)), (lambda j=j: rdB(1,j,1))]
    a(f"""s_cmp_lg_u32 s60, 2
    s_cbranch_scc1 L_p1_noarr
    s_cmp_lg_u32 s{sWID}, 0
    s_cbranch_scc1 L_p1_noarr
    v_mov_b32 v26, 0
    v_mov_b32 v27, 1
    s_mov_b64 exec, 1
    global_atomic_add v26, v27, s[20:21] sc1
    s_mov_b64 exec, -1""")
    a.label("L_p1_noarr")
    for ks in range(2):
        for j in range(4):
            for mb in range(5):
                a.need_lg(("A",ks,mb),("B",ks,j,0),("B",ks,j,1))
                c = ACC+(j*5+mb)*4
                a(f"v_mfma_f32_16x16x32_bf16 {vr(c,4)}, {vr(FB[ks]+4*j,4)}, {vr(FA[ks]+4*mb,4)}, {vr(c,4)}")
                if ks == 0 and pend and (j*5+mb) >= 2: pend.pop(0)()
    assert not pend and not a.lg
    a(f"""s_cmp_lg_u32 s60, 1
    s_cbranch_scc1 L_p1_nodrain
    s_waitcnt vmcnt(0)""")
    a.label("L_p1_nodrain")
    a(f"""s_add_u32 s61, s61, {STG}
    s_cmp_ge_u32 s61, {3*STG}
    s_cselect_b32 s61, 0, s61
    s_add_u32 s60, s60, 1
    s_cmp_lt_u32 s60, 10
    s_cbranch_scc1 L_p1""")
    sc.epoch = 10
    stamp(a, cfg, 2)
    XR=246
    a(f"""v_mul_u32_u24 v6, 1280, v5
    v_lshl_add_u32 v6, v2, 3, v6
    s_lshl_b32 s62, s{sW}, 4
    s_add_u32 s62, s62, s{sM0}
    s_mul_i32 s63, s62, 1280
    s_mul_i32 s64, s{sCG}, 160
    s_add_u32 s63, s63, s64""")
    for nb in range(5):
        a.vmem(f"buffer_load_dwordx2 {vr(XR+2*nb,2)}, v6, {srd(SX)}, s63 offen offset:{nb*32}", ("xr",nb))
    CSB=128
    for j in range(4):
        for r in range(4):
            a(f"v_mov_b32_dpp v{CSB+4*j+r}, v{ACC+j*20+r} row_newbcast:0 row_mask:0xf bank_mask:0xf")
    bar(a, sc)
    a(f"v_lshlrev_b32 v7, 3, v5\nv_add_u32 v7, {STAT}, v7")
    SS=144
    for mb in range(5): a.ds(f"ds_read_b64 {vr(SS+2*mb,2)}, v7 offset:{mb*128}", ("st",mb))
    T=160
    for mb in range(5):
        a.need_lg(("st",mb))
        for j in range(4):
            c = ACC+(j*5+mb)*4; t = T+ (j%2)*2
            for h in range(2):
                a(f"v_pk_fma_f32 {vr(c+2*h,2)}, {vr(CSB+4*j+2*h,2)}, {vr(SS+2*mb,2)}, {vr(c+2*h,2)} op_sel_hi:[1,0,1]")
            for h in range(2):
                a(f"v_pk_mul_f32 {vr(c+2*h,2)}, {vr(c+2*h,2)}, {vr(SS+2*mb,2)} op_sel:[0,1] op_sel_hi:[1,1]")
            a(f"v_cvt_pk_bf16_f32 v{c}, v{c}, v{c+1}")
            a(f"v_cvt_pk_bf16_f32 v{c+1}, v{c+2}, v{c+3}")
            a.ds(f"ds_write_b64 v{vW[j]}, {vr(c,2)} offset:{mb*16*QROW}")
    a.wait_lg(0)
    bar(a, sc)
    stamp(a, cfg, 3)
    a(f"""v_add_u32 v7, 2, v0
    v_mul_u32_u24 v7, {QROW}, v7
    s_mul_i32 s52, s{sW}, 48
    s_add_u32 s52, s52, {QKV}
    v_add_u32 v7, s52, v7""")
    Q=32; KR=44; VR=140; LG=10
    def rd40(dst, off, tag):
        a.ds(f"ds_read_b128 {vr(dst,4)}, v7 offset:{off}")
        a.ds(f"ds_read_b128 {vr(dst+4,4)}, v7 offset:{off+16}")
        a.ds(f"ds_read_b64 {vr(dst+8,2)}, v7 offset:{off+32}", tag)
    rd40(Q, 14*QROW, ("q",))
    for kw in range(4): rd40(KR+12*kw, (14-2*kw)*QROW+192, ("k",kw))
    for kw in range(8):
        a.need_lg(("q",),("k",kw))
        if kw+4 < 8: rd40(KR+12*(kw+4), (14-2*(kw+4))*QROW+192, ("k",kw+4))
        else: rd40(VR+12*(kw-4), (14-2*(kw-4))*QROW+384, ("v",kw-4))
        for d in range(10):
            a(f"v_dot2_f32_bf16 v{LG+kw}, v{Q+d}, v{KR+12*kw+d}, {'0' if d==0 else 'v%d'%(LG+kw)}")
    for kw in range(4,8): rd40(VR+12*kw, (14-2*kw)*QROW+384, ("v",kw))
    a(f"""s_cmp_lg_u32 s{sRB}, 0
    s_cbranch_scc1 L_nomask
    v_mov_b32 v18, {fhex(-1e30)}""")
    for kw in range(1,8):
        a(f"v_cmp_gt_u32 vcc, {2*kw}, v0")
        a(f"v_cndmask_b32 v{LG+kw}, v{LG+kw}, v18, vcc")
    a.label("L_nomask")
    cexp = (20 ** -0.5) * math.log2(math.e)
    a(f"""v_max3_f32 v18, v10, v11, v12
    v_max3_f32 v19, v13, v14, v15
    v_max3_f32 v18, v18, v16, v17
    v_max_f32 v18, v18, v19
    s_mov_b32 s52, {fhex(cexp)}
    v_mul_f32 v18, {fhex(-cexp)}, v18""")
    for kw in range(8): a(f"v_fma_f32 v{LG+kw}, v{LG+kw}, s52, v18")
    for kw in range(8): a(f"v_exp_f32 v{LG+kw}, v{LG+kw}")
    a("""v_add_f32 v18, v10, v11
    v_add_f32 v19, v12, v13
    v_add_f32 v20, v14, v15
    v_add_f32 v21, v16, v17
    v_add_f32 v18, v18, v19
    v_add_f32 v20, v20, v21
    v_add_f32 v18, v18, v20
    v_rcp_f32 v18, v18""")
    PL=32; PH=40
    for kw in range(8): a(f"v_mul_f32 v{LG+kw}, v{LG+kw}, v18")
    for kw in range(8):
        a(f"v_cvt_pk_bf16_f32 v{PL+kw}, v{LG+kw}, 0")
        a(f"v_cvt_pk_bf16_f32 v{PH+kw}, 0, v{LG+kw}")
    OA=48
    for kw in range(8):
        a.need_lg(("v",kw))
        for i in range(10):
            a(f"v_dot2_f32_bf16 v{OA+2*i}, v{VR+12*kw+i}, v{PL+kw}, {'0' if kw==0 else 'v%d'%(OA+2*i)}")
            a(f"v_dot2_f32_bf16 v{OA+2*i+1}, v{VR+12*kw+i}, v{PH+kw}, {'0' if kw==0 else 'v%d'%(OA+2*i+1)}")
    OP=72
    for i in range(10): a(f"v_cvt_pk_bf16_f32 v{OP+i}, v{OA+2*i}, v{OA+2*i+1}")
    a(f"""v_mul_u32_u24 v8, 20480, v2
    v_lshl_add_u32 v8, v5, 4, v8
    s_lshl_b32 s52, s{sCG}, 2
    s_add_u32 s52, s52, s{sW}
    s_mul_i32 s52, s52, 5
    s_lshr_b32 s52, s52, 1
    s_mul_i32 s53, s{sRB}, {4*20480}
    s_add_u32 s53, s53, {O_P}
    s_lshl_b32 s52, s52, 8
    s_add_u32 s53, s53, s52
    s_bitcmp1_b32 s{sW}, 0
    s_cbranch_scc1 L_oodd
    buffer_store_dwordx4 {vr(OP,4)}, v8, {srd(SWS)}, s53 offen sc1
    buffer_store_dwordx4 {vr(OP+4,4)}, v8, {srd(SWS)}, s53 offen offset:256 sc1
    buffer_store_dwordx2 {vr(OP+8,2)}, v8, {srd(SWS)}, s53 offen offset:512 sc1
    s_branch L_odone""")
    a.label("L_oodd")
    a(f"""buffer_store_dwordx2 {vr(OP,2)}, v8, {srd(SWS)}, s53 offen offset:8 sc1
    buffer_store_dwordx4 {vr(OP+2,4)}, v8, {srd(SWS)}, s53 offen offset:256 sc1
    buffer_store_dwordx4 {vr(OP+6,4)}, v8, {srd(SWS)}, s53 offen offset:512 sc1""")
    a.label("L_odone")
    a("s_waitcnt vmcnt(0)"); a.vm = []
    stamp(a, cfg, 4)

    def sync(name, cidx_code, target):
        bar(a, sc)
        a(f"""s_cmp_lg_u32 s{sWID}, 0
        s_cbranch_scc1 {name}_skip
        {cidx_code}
        v_mov_b32 v26, s52
        v_mov_b32 v27, 1
        s_mov_b64 exec, 1
        global_atomic_add v26, v27, s[22:23] sc1""")
        poll(a, name, 26, 28, "s[22:23]", target)
        a("s_mov_b64 exec, -1")
        a.label(name+"_skip")
        bar(a, sc)
    a(f"""s_and_b32 s64, s{sW}, 1
    s_lshr_b32 s65, s{sW}, 1
    s_mul_i32 s52, s64, 5120
    v_add_u32 v10, s52, v1
    v_add_u32 v11, 0x10000, v10
    v_add_u32 v12, 0x20000, v10
    v_add_u32 v13, 0x10000, v1
    v_add_u32 v14, 0x20000, v1""")
    def baddr(byte, kh):
        b = byte >> 16
        return (f"v{10+b}" if kh else ("v1","v13","v14")[b]), byte & 0xffff
    sync("L_s1", f"s_lshl_b32 s52, s{sRB}, 7\ns_and_b32 s53, s52, 128\ns_lshl_b32 s52, s{sGRP}, 9\ns_add_u32 s52, s52, s53", 8)
    if cfg.stop <= 1: a("s_branch L_fin")
    stamp(a, cfg, 5)

    def gemm_small(ph, nsteps, ksteps_total, abase, ring):
        AC=32; BF=[72,92]; AR=112
        a(f"""s_lshl_b32 s52, s{sRB}, 2
        s_lshl_b32 s53, s65, 1
        s_add_u32 s52, s52, s53
        s_add_u32 s53, s52, s64
        s_sub_u32 s54, s52, s64
        s_add_u32 s54, s54, 1
        s_mul_i32 s66, s53, {ksteps_total*1024}
        s_mul_i32 s67, s54, {ksteps_total*1024}
        s_mul_i32 s55, s64, {nsteps*1024}
        s_add_u32 s55, s55, {abase}
        s_add_u32 s66, s66, s55
        s_add_u32 s67, s67, s55""")
        def ldA(s):
            if s and s % 4 == 0: a("s_add_u32 s66, s66, 4096\ns_add_u32 s67, s67, 4096")
            for j in range(2):
                a.vmem(f"buffer_load_dwordx4 {vr(AR+(s%ring)*8+4*j,4)}, v1, {srd(SWS)}, s{66+j} offen offset:{(s%4)*1024} sc1", ("A",s,j))
        def rdBs(s):
            p = sc.read((ph, s//2))
            for nb in range(5):
                reg, off = baddr((p + (s%2)*10 + nb)*1024, True)
                a.ds(f"ds_read_b128 {vr(BF[s%2]+4*nb,4)}, {reg} offset:{off}", ("B",s,nb))
        for s in range(min(ring, nsteps)): ldA(s)
        rdBs(0)
        for s in range(nsteps):
            if ph == "p4" and s and s % 2 == 0: bar(a, sc)
            if s+1 < nsteps: rdBs(s+1)
            for j in range(2):
                a.need_vm(("A",s,j))
                for nb in range(5):
                    a.need_lg(("B",s,nb))
                    c = AC+(j*5+nb)*4
                    a(f"v_mfma_f32_16x16x32_bf16 {vr(c,4)}, {vr(BF[s%2]+4*nb,4)}, {vr(AR+(s%ring)*8+4*j,4)}, {'0' if s==0 else vr(c,4)}")
            if s+ring < nsteps: ldA(s+ring)
        a(f"""s_mul_i32 s52, s{sW}, 5120
        s_add_u32 s52, s52, {XB}
        v_add_u32 v15, s52, v1
        s_xor_b32 s53, s{sW}, 1
        s_mul_i32 s53, s53, 5120
        s_add_u32 s53, s53, {XB}
        v_add_u32 v16, s53, v1""")
        for nb in range(5): a.ds(f"ds_write_b128 v15, {vr(AC+20+4*nb,4)} offset:{nb*1024}")
        a.wait_lg(0)
        bar(a, sc)
        for nb in range(5): a.ds(f"ds_read_b128 {vr(AC+20+4*nb,4)}, v16 offset:{nb*1024}", ("X",nb))
        for nb in range(5):
            for h in range(2):
                a(f"v_lshlrev_b32 v{72+4*nb+2*h}, 16, v{XR+2*nb+h}")
                a(f"v_and_b32 v{72+4*nb+2*h+1}, 0xffff0000, v{XR+2*nb+h}")
        for nb in range(5):
            a.need_lg(("X",nb))
            for h in range(2):
                a(f"v_pk_add_f32 {vr(AC+4*nb+2*h,2)}, {vr(AC+4*nb+2*h,2)}, {vr(AC+20+4*nb+2*h,2)}")
            for h in range(2):
                a(f"v_pk_add_f32 {vr(AC+4*nb+2*h,2)}, {vr(AC+4*nb+2*h,2)}, {vr(72+4*nb+2*h,2)}")
            for h in range(2):
                a(f"v_cvt_pk_bf16_f32 v{XR+2*nb+h}, v{AC+4*nb+2*h}, v{AC+4*nb+2*h+1}")

    gemm_small("p2", 10, 20, O_P, 16)
    a(f"""s_lshl_b32 s52, s{sRB}, 2
    s_add_u32 s52, s52, s{sW}
    s_mul_i32 s52, s52, 20480
    s_mul_i32 s53, s{sCG}, 5
    s_lshr_b32 s53, s53, 1
    s_lshl_b32 s53, s53, 10
    s_add_u32 s52, s52, s53
    s_add_u32 s52, s52, {H_P}
    s_bitcmp1_b32 s{sCG}, 0
    s_cbranch_scc1 L_hodd
    buffer_store_dwordx4 {vr(XR,4)}, v1, {srd(SWS)}, s52 offen sc1
    buffer_store_dwordx4 {vr(XR+4,4)}, v1, {srd(SWS)}, s52 offen offset:1024 sc1
    buffer_store_dwordx2 {vr(XR+8,2)}, v1, {srd(SWS)}, s52 offen offset:2048 sc1
    s_branch L_hdone""")
    a.label("L_hodd")
    a(f"""buffer_store_dwordx2 {vr(XR,2)}, v1, {srd(SWS)}, s52 offen offset:8 sc1
    buffer_store_dwordx4 {vr(XR+2,4)}, v1, {srd(SWS)}, s52 offen offset:1024 sc1
    buffer_store_dwordx4 {vr(XR+6,4)}, v1, {srd(SWS)}, s52 offen offset:2048 sc1""")
    a.label("L_hdone")
    for i in range(10):
        a(f"v_dot2_f32_bf16 v16, v{XR+i}, s3, {'0' if i==0 else 'v16'}")
        a(f"v_dot2_f32_bf16 v17, v{XR+i}, v{XR+i}, {'0' if i==0 else 'v17'}")
    reduce_g(a, [16,17], [18,19])
    a(f"""v_lshlrev_b32 v18, 6, v5
    s_lshl_b32 s52, s62, 6
    s_lshl_b32 s53, s{sCG}, 3
    s_add_u32 s52, s52, s53
    s_add_u32 s52, s52, {ST}
    s_mov_b32 exec_lo, 0xffff
    s_mov_b32 exec_hi, 0
    buffer_store_dwordx2 v[16:17], v18, {srd(SWS)}, s52 offen sc1
    s_mov_b64 exec, -1
    s_waitcnt vmcnt(0)"""); a.vm = []
    stamp(a, cfg, 6)
    sync("L_s2", f"s_lshl_b32 s52, s{sGRP}, 9\ns_add_u32 s52, s52, 256", 16)
    if cfg.stop <= 2: a("s_branch L_fin")
    stamp(a, cfg, 7)
    AC=32; BF=[128,152]; AR=176; RING=8
    a(f"""s_lshl_b32 s52, s{sGRP}, 3
    s_lshl_b32 s53, s{sW}, 1
    s_add_u32 s52, s52, s53
    s_mul_i32 s66, s52, 20480
    s_add_u32 s66, s66, {H_P}
    s_add_u32 s67, s66, 20480
    s_lshl_b32 s53, s52, 10
    s_add_u32 s53, s53, {ST}
    s_mul_i32 s68, s52, {48*1024}
    s_mul_i32 s54, s{sFG}, 3072
    s_add_u32 s68, s68, s54
    s_add_u32 s68, s68, {HH_P}
    v_lshlrev_b32 v18, 6, v5
    v_lshl_add_u32 v18, v2, 4, v18""")
    def ldA3(k):
        if k and k % 4 == 0: a("s_add_u32 s66, s66, 4096\ns_add_u32 s67, s67, 4096")
        for j in range(2):
            a.vmem(f"buffer_load_dwordx4 {vr(AR+(k%RING)*8+4*j,4)}, v1, {srd(SWS)}, s{66+j} offen offset:{(k%4)*1024} sc1", ("A",k,j))
    def rdB3(k, hf):
        p = sc.read(("p3",k))
        for i in range(6):
            reg, off = baddr((p + hf*6 + i)*1024, False)
            a.ds(f"ds_read_b128 {vr(BF[hf]+4*i,4)}, {reg} offset:{off}", ("B",k,hf,i))
    ldA3(0)
    for j in range(2):
        a.vmem(f"buffer_load_dwordx4 {vr(20+4*j,4)}, v18, {srd(SWS)}, s53 offen offset:{j*1024} sc1", ("st",j))
    for k in range(1, RING): ldA3(k)
    rdB3(0,0)
    for k in range(20):
        if k and k % 2 == 0: bar(a, sc)
        for hf in range(2):
            if hf == 0: rdB3(k,1)
            elif k+1 < 20: rdB3(k+1,0)
            for i in range(6):
                a.need_lg(("B",k,hf,i))
                for j in range(2):
                    a.need_vm(("A",k,j))
                    c = AC+(j*12+hf*6+i)*4
                    a(f"v_mfma_f32_16x16x32_bf16 {vr(c,4)}, {vr(BF[hf]+4*i,4)}, {vr(AR+(k%RING)*8+4*j,4)}, {'0' if k==0 else vr(c,4)}")
        if k+RING < 20: ldA3(k+RING)
    stamp(a, cfg, 8)
    a(f"v_lshlrev_b32 v18, 4, v2\nv_add_u32 v18, {CST}, v18")
    CG=128
    for p in range(6):
        a.ds(f"ds_read_b128 {vr(CG+8*p,4)}, v18 offset:{p*64}")
        a.ds(f"ds_read_b128 {vr(CG+8*p+4,4)}, v18 offset:{384+p*64}", ("cs",p))
    a("""v_add_f32 v20, v20, v22
    v_add_f32 v21, v21, v23
    v_add_f32 v24, v24, v26
    v_add_f32 v25, v25, v27""")
    reduce_g(a, [20,21,24,25], [22,23,26,27])
    k0 = -2.0*math.sqrt(2.0/math.pi)*math.log2(math.e); k1 = k0*0.044715
    for j in range(2):
        b = 20+4*j
        ln_finish(a, b, b+1, None)
        a(f"""v_mul_f32 v{b+2}, {fhex(k0)}, v{b+1}
        v_mul_f32 v{b+3}, {fhex(k1)}, v{b+1}
        v_mul_f32 v{b+1}, v{b+1}, v{b+1}
        v_mul_f32 v{b+3}, v{b+3}, v{b+1}""")
    TT=176; HO=200
    for j in range(2):
        b = 20+4*j
        for p in range(6):
            a.need_lg(("cs",p))
            G = AC+(j*12+2*p)*4; U = G+4
            for h in range(2):
                a(f"v_pk_fma_f32 {vr(G+2*h,2)}, {vr(CG+8*p+2*h,2)}, {vr(b,2)}, {vr(G+2*h,2)} op_sel_hi:[1,0,1]")
            for h in range(2):
                a(f"v_pk_fma_f32 {vr(U+2*h,2)}, {vr(CG+8*p+4+2*h,2)}, {vr(b,2)}, {vr(U+2*h,2)} op_sel_hi:[1,0,1]")
            for h in range(2): a(f"v_pk_mul_f32 {vr(TT+2*h,2)}, {vr(G+2*h,2)}, {vr(G+2*h,2)}")
            for h in range(2): a(f"v_pk_fma_f32 {vr(TT+2*h,2)}, {vr(TT+2*h,2)}, {vr(b+2,2)}, {vr(b+2,2)} op_sel:[0,1,0] op_sel_hi:[1,1,0]")
            for h in range(2): a(f"v_pk_mul_f32 {vr(TT+2*h,2)}, {vr(TT+2*h,2)}, {vr(G+2*h,2)}")
            for r in range(4): a(f"v_exp_f32 v{TT+r}, v{TT+r}")
            for h in range(2): a(f"v_pk_mul_f32 {vr(U+2*h,2)}, {vr(U+2*h,2)}, {vr(G+2*h,2)}")
            for h in range(2): a(f"v_pk_add_f32 {vr(TT+2*h,2)}, {vr(TT+2*h,2)}, 1.0 op_sel_hi:[1,0]")
            for r in range(4): a(f"v_rcp_f32 v{TT+r}, v{TT+r}")
            for h in range(2): a(f"v_pk_mul_f32 {vr(U+2*h,2)}, {vr(U+2*h,2)}, {vr(b,2)} op_sel:[0,1] op_sel_hi:[1,1]")
            for h in range(2): a(f"v_pk_mul_f32 {vr(U+2*h,2)}, {vr(U+2*h,2)}, {vr(TT+2*h,2)}")
            o = HO + ((j*3+p//2)%2)*4 + (p%2)*2
            for h in range(2): a(f"v_cvt_pk_bf16_f32 v{o+h}, v{U+2*h}, v{U+2*h+1}")
            if p % 2 == 1:
                if j == 1 and p == 1: a(f"s_add_u32 s68, s68, {48*1024}")
                a.vmem(f"buffer_store_dwordx4 {vr(HO+((j*3+p//2)%2)*4,4)}, v1, {srd(SWS)}, s68 offen offset:{(p//2)*1024} sc1")
    a("s_waitcnt vmcnt(0)"); a.vm = []
    stamp(a, cfg, 9)
    sync("L_s3", f"s_lshl_b32 s52, s{sGRP}, 9\ns_add_u32 s52, s52, 384", 16)
    if cfg.stop <= 3: a("s_branch L_fin")
    stamp(a, cfg, 10)
    gemm_small("p4", 24, 48, HH_P, 16)
    for nb in range(5):
        a(f"buffer_store_dwordx2 {vr(XR+2*nb,2)}, v6, {srd(SO)}, s63 offen offset:{nb*32}")
    stamp(a, cfg, 11)
    a("s_branch L_fin")
    return sc.epoch

def plan(sc, nbar):
    free = [False]*160
    def rel(lo, hi):
        for i in range(lo, hi): free[i] = True
    issue = {}; pos = {}; nxt = 0
    for e in range(0, nbar+1):
        if e == 9: rel(42, 84)
        if e == 10: rel(84, 112)
        if e == 11: rel(0, 42)
        if e == 13: rel(112, 138)
        for u, l in sc.last.items():
            if l == e-1 and u in pos: rel(pos[u], pos[u]+dict(((x[0],x[1]),x[2]) for x in UNITS)[u])
        issue[e] = []
        while nxt < len(UNITS):
            ph, i, n = UNITS[nxt]
            found = None
            for s in range(0, 160-n+1):
                if all(free[s:s+n]): found = s; break
            if found is None: break
            for k in range(found, found+n): free[k] = False
            pos[(ph,i)] = found; issue[e].append((ph,i,n)); nxt += 1
    return issue, pos

def helper(a, cfg, sc, issue, nbar):
    a.lg = []; a.vm = []
    a.label("L_helper")
    a("""v_lshrrev_b32 v2, 4, v0
    v_and_b32 v5, 15, v0
    v_lshrrev_b32 v6, 5, v0
    v_bfe_u32 v7, v0, 1, 4
    v_and_b32 v8, 1, v0
    v_lshlrev_b32 v8, 4, v8""")
    vB=[10,11,12,13]; vA=[14,15,16]
    a(f"s_mul_i32 s52, s{sCG}, 160\nv_add_u32 v8, s52, v8\nv_mov_b32 v22, 0x80000000")
    for i in range(4):
        a(f"""s_lshl_b32 s53, s{sW}, 1
        s_add_u32 s53, s53, {8*i}
        v_add_u32 v9, s53, v6
        v_and_b32 v17, 3, v9
        v_bfe_u32 v18, v9, 3, 1
        v_lshl_add_u32 v17, v18, 2, v17
        v_xor_b32 v17, v7, v17
        v_mul_u32_u24 v18, 52, v17
        v_lshrrev_b32 v18, 8, v18
        v_mul_u32_u24 v19, {1280-160}, v18
        v_lshl_add_u32 v19, v17, 5, v19
        v_mul_u32_u24 v9, 3840, v9
        v_add3_u32 v9, v9, v19, v8
        v_cmp_eq_u32 vcc, 15, v17
        v_cndmask_b32 v{vB[i]}, v9, v22, vcc""")
    a(f"""v_lshrrev_b32 v6, 3, v0
    v_and_b32 v7, 7, v0
    s_add_u32 s54, s{sW}, 4
    s_add_u32 s55, s{sW}, 8
    s_cmp_lt_u32 s{sW}, 2
    s_cselect_b32 s55, s55, s54
    s_mov_b32 s53, s{sW}
    s_sub_u32 s56, s{sM0}, 16""")
    for i in range(3):
        a(f"""s_lshl_b32 s57, s{53+i}, 3
        v_add_u32 v9, s57, v6
        v_bfe_u32 v17, v9, 1, 3
        v_xor_b32 v17, v7, v17
        v_add_u32 v9, s56, v9
        v_max_i32 v9, 0, v9
        v_mul_u32_u24 v9, 1280, v9
        v_lshl_add_u32 v{vA[i]}, v17, 4, v9
        s_lshl_b32 s{70+i}, s{53+i}, 10""")
    a(f"""s_lshl_b32 s73, s{sW}, 10
    s_add_u32 s73, s73, {A_SZ}
    s_cmp_eq_u32 s{sW}, 0
    s_cselect_b32 s74, 0xffffff00, -1
    s_mov_b32 s60, s{sROT}
    s_mov_b32 s61, 0""")
    def issue_stage(tag):
        a(f"""s_lshl_b32 s62, s60, 7
        s_mul_i32 s63, s60, {64*3840}
        s_add_u32 m0, s61, s70
        s_mov_b32 exec_lo, s74""")
        a.vmem(f"buffer_load_dwordx4 v{vA[0]}, {srd(SX)}, s62 offen lds", tag)
        a("s_mov_b32 exec_lo, -1\ns_add_u32 m0, s61, s71\ns_add_u32 s64, s61, s73")
        a.vmem(f"buffer_load_dwordx4 v{vA[1]}, {srd(SX)}, s62 offen lds", tag)
        a("s_add_u32 m0, s61, s72\ns_nop 0")
        a.vmem(f"buffer_load_dwordx4 v{vA[2]}, {srd(SX)}, s62 offen lds", tag)
        for ks in range(2):
            for i in range(4):
                a(f"s_add_u32 m0, s64, {ks*16384+i*4096}")
                if ks == 1 and i == 0: a(f"s_add_u32 s63, s63, {32*3840}")
                a.vmem(f"buffer_load_dwordx4 v{vB[i]}, {srd(SW)}, s63 offen lds", tag)
        a(f"""s_add_u32 s60, s60, 1
        s_cmp_ge_u32 s60, 10
        s_cselect_b32 s60, 0, s60
        s_add_u32 s61, s61, {STG}
        s_cmp_ge_u32 s61, {3*STG}
        s_cselect_b32 s61, 0, s61""")
    for t in range(3): issue_stage(("S",t))
    a(f"""v_mov_b32 v24, s3
    v_mov_b32 v25, s3
    v_mov_b32 v26, s3
    v_mov_b32 v27, s3
    s_mov_b64 exec, 0xff""")
    for t in range(3): a(f"ds_write_b128 v1, v[24:27] offset:{t*STG}" if t*STG < 65536 else f"v_add_u32 v28, {t*STG}, v1\nds_write_b128 v28, v[24:27]")
    a("s_mov_b64 exec, -1")
    if cfg.warm:
        a(f"""s_getpc_b64 s[66:67]
        s_and_b32 s66, s66, 0xffff0000
        s_lshr_b32 s52, s2, 3
        s_lshl_b32 s52, s52, 11
        v_lshlrev_b32 v28, 7, v0
        v_add_u32 v28, s52, v28
        s_mov_b64 exec, 0xffff""")
        a.raw("; warm placeholder")
        a("s_mov_b64 exec, -1")
    a(f"""v_lshrrev_b32 v8, 1, v5
    v_xor_b32 v9, v2, v8
    v_lshlrev_b32 v9, 4, v9
    v_lshl_add_u32 v17, v5, 7, v9
    v_xor_b32 v18, 64, v17
    s_lshl_b32 s65, s{sW}, 11
    s_mov_b32 s75, 0
    v_mov_b32 v30, 0
    v_mov_b32 v31, 0
    v_mov_b32 v32, 0
    v_mov_b32 v33, 0
    s_waitcnt lgkmcnt(0)""")
    def stats():
        a(f"""s_add_u32 s52, s75, s65
        v_add_u32 v19, s52, v17
        v_add_u32 v20, s52, v18
        v_add_u32 v21, s75, v17
        v_add_u32 v23, s75, v18""")
        a.ds("ds_read_b128 v[36:39], v19", ("s",0)); a.ds("ds_read_b128 v[40:43], v20", ("s",1))
        a.ds("ds_read_b128 v[44:47], v21 offset:8192", ("s",2)); a.ds("ds_read_b128 v[48:51], v23 offset:8192", ("s",3))
        for q in range(4):
            a.need_lg(("s",q))
            for d in range(4):
                a(f"v_dot2_f32_bf16 v{30+2*(q//2)}, v{36+4*q+d}, s3, v{30+2*(q//2)}")
                a(f"v_dot2_f32_bf16 v{31+2*(q//2)}, v{36+4*q+d}, v{36+4*q+d}, v{31+2*(q//2)}")
        a(f"""s_add_u32 s75, s75, {STG}
        s_cmp_ge_u32 s75, {3*STG}
        s_cselect_b32 s75, 0, s75""")
    a.need_vm(("S",0)); a("s_barrier"); stats()
    a("s_mov_b32 s59, 1")
    a.label("L_h1")
    a("s_waitcnt vmcnt(11)\ns_barrier")
    a.vm = []
    issue_stage(None); stats()
    a("s_add_u32 s59, s59, 1\ns_cmp_lt_u32 s59, 7\ns_cbranch_scc1 L_h1")
    a.vm = [("S",7)]*11 + [("S",8)]*11
    a.need_vm(("S",7)); a("s_barrier")
    a("v_mov_b32 v28, 0")
    a.vmem("global_load_dword v29, v28, s[20:21] sc1", ("pk",))
    issue_stage(("S",9)); stats()
    a(f"""s_lshl_b32 s66, s{sW}, 10
    s_mul_i32 s67, s{sCG}, 102400
    s_add_u32 s67, s67, {WO_P}
    s_add_u32 s67, s67, s66
    s_mul_i32 s68, s{sFG}, 245760
    s_add_u32 s68, s68, {WGU_P}
    s_add_u32 s68, s68, s66
    s_mul_i32 s69, s{sCG}, 245760
    s_add_u32 s69, s69, {WD_P}
    s_add_u32 s69, s69, s66""")
    sreg = {"p2":67, "p3":68, "p4":69}
    def issue_units(e):
        for (ph,i,n) in issue.get(e, []):
            p = sc.pos[(ph,i)]
            for q in range(n//4):
                a(f"s_add_u32 m0, s66, {(p+4*q)*1024}")
                a(f"s_nop 0")
                a.vmem(f"buffer_load_dwordx4 v1, {srd(SWS)}, s{sreg[ph]} offen sc1 lds", (ph,i))
                a(f"s_add_u32 s{sreg[ph]}, s{sreg[ph]}, 4096")
    def need_units(e):
        for u, f in sc.first.items():
            if f <= e: a.need_vm(u)
    a.need_vm(("S",8),("pk",)); a("s_barrier")
    a(f"""v_readfirstlane_b32 s53, v29
    s_cmp_ge_u32 s53, 256
    s_cbranch_scc1 L_pk_ok""")
    poll(a, "L_pk", 28, 29, "s[20:21]", 256)
    issue_units(9); stats()
    a.need_vm(("S",9)); a("s_barrier")
    issue_units(10); stats()
    reduce_g(a, [30,31,32,33], [36,37,38,39])
    ln_finish(a, 30, 31, None); ln_finish(a, 32, 33, None)
    a(f"""v_lshlrev_b32 v19, 3, v5
    s_lshl_b32 s52, s{sW}, 7
    s_add_u32 s52, s52, {STAT}
    v_add_u32 v20, s52, v19
    v_add_u32 v21, {STAT+512}, v19
    ds_write_b64 v20, v[30:31]
    ds_write_b64 v21, v[32:33]
    s_waitcnt lgkmcnt(0)
    s_barrier""")
    a(f"""s_lshl_b32 s52, s{sW}, 6
    v_add_u32 v19, s52, v0
    v_min_u32 v19, 191, v19
    v_cmp_le_u32 vcc, 96, v19
    v_mov_b32 v20, 0
    v_mov_b32 v21, 1440
    v_cndmask_b32 v20, v20, v21, vcc
    s_mul_i32 s52, s{sFG}, 96
    v_add3_u32 v20, v20, v19, s52
    v_lshlrev_b32 v20, 2, v20
    v_lshlrev_b32 v19, 2, v19
    v_add_u32 v19, {CST}, v19
    s_mov_b32 s52, {CS}""")
    for kq in range(5):
        a.vmem(f"buffer_load_dword v{36+kq}, v20, {srd(SWS)}, s52 offen sc1", ("cs",kq))
        if kq < 4: a("s_add_u32 s52, s52, 12288")
    issue_units(11)
    a.need_vm(("cs",4))
    a("""v_add_f32 v36, v36, v37
    v_add_f32 v38, v38, v39
    v_add_f32 v36, v36, v40
    v_add_f32 v36, v36, v38
    ds_write_b32 v19, v36
    s_waitcnt lgkmcnt(0)""")
    for e in range(12, nbar+1):
        need_units(e); a("s_barrier")
        if (cfg.stop <= 1 and e == 14) or (cfg.stop <= 2 and e == 17) or (cfg.stop <= 3 and e == 28):
            a("s_waitcnt vmcnt(0)\ns_branch L_fin"); break
        issue_units(e)
    a("s_waitcnt vmcnt(0)")

def build(cfg):
    sc = Sched()
    a = Asm(); nbar = compute(a, cfg, sc)
    issue, pos = plan(sc, nbar)
    assert len(pos) == len(UNITS)
    first, last = dict(sc.first), dict(sc.last)
    sc2 = Sched(); sc2.pos = pos
    a = Asm()
    prologue(a, cfg)
    nbar = compute(a, cfg, sc2)
    assert sc2.first == first
    for e in sorted(issue):
        for (ph,i,n) in issue[e]:
            assert e < first[(ph,i)], (e, ph, i, first[(ph,i)])
    helper(a, cfg, sc2, issue, nbar)
    a.label("L_fin")
    if cfg.prof:
        a("s_memtime s[100:101]\ns_waitcnt lgkmcnt(0)")
        a(f"""s_and_b32 s52, s{sWID}, 3
        s_cmp_lg_u32 s52, 0
        s_cbranch_scc1 L_end
        s_lshl_b32 s52, s2, 7
        s_lshl_b32 s53, s{sWID}, 4
        s_add_u32 s52, s52, s53
        s_add_u32 s52, s52, {PROFO}
        s_mov_b64 exec, 1
        v_mov_b32 v2, 0""")
        for i in range(13):
            a(f"v_mov_b32 v3, s{76+2*i}\nbuffer_store_dword v3, v2, {srd(SWS)}, s52 offen offset:{4*i}")
        a("s_waitcnt vmcnt(0)")
    a.label("L_end")
    a("s_endpgm")
    body = a.finish()
    if cfg.warm:
        body = body.replace("; warm placeholder", "  global_load_dword v29, v28, s[66:67]")
    head = open("cdna_kernels/%s.s.ref" % NAME).read().split("; Override")[0]
    txt = head + f"""; @launch grid=(256,1,1) block=(512,1,1) lds={LDS_SZ}
.amdgcn_target "amdgcn-amd-amdhsa--gfx950"
.text
.globl {NAME}_kernel
.p2align 8
.type {NAME}_kernel,@function
{NAME}_kernel:
""" + body + f""".section .rodata,"a"
.p2align 6
.amdhsa_kernel {NAME}_kernel
  .amdhsa_next_free_vgpr 256
  .amdhsa_next_free_sgpr 102
  .amdhsa_accum_offset 256
  .amdhsa_group_segment_fixed_size 0
  .amdhsa_kernarg_size 80
  .amdhsa_user_sgpr_count 2
  .amdhsa_user_sgpr_kernarg_segment_ptr 1
  .amdhsa_system_sgpr_workgroup_id_x 1
.end_amdhsa_kernel
"""
    return txt, issue, pos, first, last

if __name__ == "__main__":
    import argparse
    ap = argparse.ArgumentParser()
    ap.add_argument("-o", default=f"cdna_kernels/{NAME}.s")
    ap.add_argument("--prof", action="store_true"); ap.add_argument("--stop", type=int, default=99)
    ap.add_argument("--norot", action="store_true"); ap.add_argument("--nowarm", action="store_true")
    ap.add_argument("-v", action="store_true")
    args = ap.parse_args()
    cfg = Cfg(); cfg.prof = args.prof; cfg.stop = args.stop; cfg.rot = not args.norot; cfg.warm = not args.nowarm
    txt, issue, pos, first, last = build(cfg)
    open(args.o, "w").write(txt)
    if args.v:
        for e in sorted(issue): print(e, [(u[0],u[1],pos[(u[0],u[1])]) for u in issue[e]])
        print(first)
```
